```python
import torch

def _softmax(x, axis=-1):
    return torch.softmax(x, dim=axis)
def _gelu(x):
    return torch.nn.functional.gelu(x, approximate="tanh")
def _silu(x):
    return torch.nn.functional.silu(x)
def _sigmoid(x):
    return torch.sigmoid(x)
def _layernorm(x, axis=-1, eps=1e-5):
    m = x.mean(dim=axis, keepdim=True)
    v = x.var(dim=axis, keepdim=True, unbiased=False)
    return (x - m) / torch.sqrt(v + eps)
def _scatter_add(tgt, idx, src, axis=0):
    return tgt.clone().index_add_(axis, idx, src)
def _segment_sum(src, seg, n):
    out = torch.zeros((n,) + src.shape[1:], dtype=src.dtype)
    return out.index_add_(0, seg, src)
def _pad(x, pw):
    flat = tuple(v for pair in reversed(pw) for v in pair)
    return torch.nn.functional.pad(x, flat)

kernel_name = 'concat_heads__sliding_block_cached__gqa_block_cached__decode'

def setup_inputs():

    _w = (lambda a: (lambda t: t.to(torch.bfloat16) if t.is_floating_point() else t)(torch.as_tensor(a)))
    def _A_setup():
        B, Sq, D = 1, 1, 576
        Hq, Hkv, Sk, Dh = 32, 16, 8192, 128
        assert Hq % Hkv == 0, (Hq, Hkv)
        return {
            "x": _w((lambda *s: torch.randn(*s, dtype=torch.bfloat16) * 0.8)(B, Sq, D)),
            "k_cache": _w((lambda *s: torch.randn(*s, dtype=torch.bfloat16) * 1.6)(B, Hkv, Sk, Dh)),
            "v_cache": _w((lambda *s: torch.randn(*s, dtype=torch.bfloat16) * 0.2)(B, Hkv, Sk, Dh)),
            "wq": _w((lambda *s: torch.randn(*s, dtype=torch.bfloat16) * 1.6)(D, Hq * Dh) * (D ** -0.5)),
            "wo": _w((lambda *s: torch.randn(*s, dtype=torch.bfloat16) * 0.2)(Hq * Dh, D) * ((Hq * Dh) ** -0.5)),
        }
    _A_in = _A_setup()

    def _B_setup():
        B, Sq, D = 1, 1, 576
        Hq, Hkv, Sk, Dh = 32, 16, 8192, 128
        assert Hq % Hkv == 0, (Hq, Hkv)
        return {
            "x": _w((lambda *s: torch.randn(*s, dtype=torch.bfloat16) * 0.8)(B, Sq, D)),
            "k_cache": _w((lambda *s: torch.randn(*s, dtype=torch.bfloat16) * 1.6)(B, Hkv, Sk, Dh)),
            "v_cache": _w((lambda *s: torch.randn(*s, dtype=torch.bfloat16) * 0.2)(B, Hkv, Sk, Dh)),
            "wq": _w((lambda *s: torch.randn(*s, dtype=torch.bfloat16) * 1.6)(D, Hq * Dh) * (D ** -0.5)),
            "wo": _w((lambda *s: torch.randn(*s, dtype=torch.bfloat16) * 0.2)(Hq * Dh, D) * ((Hq * Dh) ** -0.5)),
        }
    _B_in = _B_setup()

    return {
        "A_x": _A_in["x"],
        "A_k_cache": _A_in["k_cache"],
        "A_v_cache": _A_in["v_cache"],
        "A_wq": _A_in["wq"],
        "A_wo": _A_in["wo"],
        "B_x": _B_in["x"],
        "B_k_cache": _B_in["k_cache"],
        "B_v_cache": _B_in["v_cache"],
        "B_wq": _B_in["wq"],
        "B_wo": _B_in["wo"],
    }

def reference(A_x, A_k_cache, A_v_cache, A_wq, A_wo, B_x, B_k_cache, B_v_cache, B_wq, B_wo):
    def _A_ref(x, k_cache, v_cache, wq, wo):
        B, Sq, D = x.shape
        Hq, Dh = 32, 128
        Hkv, Sk = k_cache.shape[1], k_cache.shape[2]
        W = min(4096, max(256, Sk // 4))
        rep = Hq // Hkv
        q = (lambda x, *d: x.permute(*d))((x @ wq).reshape(B, Sq, Hq, Dh), 0, 2, 1, 3)
        k = (lambda x, n, axis: torch.repeat_interleave(x, n, dim=axis))(k_cache[:, :, Sk - W:, :], rep, axis=1)
        v = (lambda x, n, axis: torch.repeat_interleave(x, n, dim=axis))(v_cache[:, :, Sk - W:, :], rep, axis=1)
        scores = torch.einsum("bhqd,bhkd->bhqk", q, k) * (Dh ** -0.5)
        p = _softmax(scores, axis=-1)
        o = torch.einsum("bhqk,bhkd->bhqd", p, v)
        return (lambda x, *d: x.permute(*d))(o, 0, 2, 1, 3).reshape(B, Sq, Hq * Dh) @ wo

    def _B_ref(x, k_cache, v_cache, wq, wo):
        B, Sq, D = x.shape
        Hq, Dh = 32, 128
        Hkv = k_cache.shape[1]
        rep = Hq // Hkv
        q = (lambda x, *d: x.permute(*d))((x @ wq).reshape(B, Sq, Hq, Dh), 0, 2, 1, 3)
        k = (lambda x, n, axis: torch.repeat_interleave(x, n, dim=axis))(k_cache, rep, axis=1)
        v = (lambda x, n, axis: torch.repeat_interleave(x, n, dim=axis))(v_cache, rep, axis=1)
        scores = torch.einsum("bhqd,bhkd->bhqk", q, k) * (Dh ** -0.5)
        p = _softmax(scores, axis=-1)
        o = torch.einsum("bhqk,bhkd->bhqd", p, v)
        return (lambda x, *d: x.permute(*d))(o, 0, 2, 1, 3).reshape(B, Sq, Hq * Dh) @ wo

    a = _A_ref(A_x, A_k_cache, A_v_cache, A_wq, A_wo)
    b = _B_ref(B_x, B_k_cache, B_v_cache, B_wq, B_wo)
    return torch.concatenate([a, b], axis=-1)
```

```python
import re
TRANS = ("v_exp_", "v_log_", "v_rcp_", "v_rsq_", "v_sqrt_", "v_sin_", "v_cos_")
def regs_of(tok):
    tok = tok.strip()
    tok = tok.lstrip("-")
    if tok.startswith("abs(") or tok.startswith("|"):
        tok = tok.replace("abs(", "").replace(")", "").replace("|", "")
    m = re.fullmatch(r"([vsa])(\d+)", tok)
    if m: return {(m.group(1), int(m.group(2)))}
    m = re.fullmatch(r"([vsa])\[(\d+):(\d+)\]", tok)
    if m: return {(m.group(1), i) for i in range(int(m.group(2)), int(m.group(3)) + 1)}
    if tok in ("vcc", "vcc_lo", "vcc_hi"): return {("x", "vcc")}
    if tok in ("exec", "exec_lo", "exec_hi"): return {("x", "exec")}
    if tok == "m0": return {("x", "m0")}
    return set()
class Ins:
    def __init__(self, text):
        self.text = text
        t = text.split(";")[0].strip()
        self.label = t.endswith(":")
        self.directive = t.startswith(".") and not self.label
        self.empty = (t == "")
        self.op = ""; self.ops = []; self.mods = ""
        self.w = set(); self.r = set()
        self.kind = "none"
        if self.label or self.directive or self.empty: return
        parts = t.split(None, 1)
        self.op = parts[0]
        rest = parts[1] if len(parts) > 1 else ""
        ops = []; cur = ""; depth = 0
        for ch in rest:
            if ch in "[(": depth += 1
            if ch in "])": depth -= 1
            if ch == "," and depth == 0: ops.append(cur.strip()); cur = ""
            else: cur += ch
        if cur.strip(): ops.append(cur.strip())
        if ops:
            last = ops[-1].split(None, 1)
            ops[-1] = last[0]
            self.mods = last[1] if len(last) > 1 else ""
        self.ops = ops
        op = self.op
        R = [regs_of(o) for o in ops]
        allr = lambda lst: set().union(*lst) if lst else set()
        self.dpp = bool(re.search(r"quad_perm|row_shl|row_shr|row_ror|row_bcast|row_newbcast|row_mirror|row_half_mirror|wave_", self.mods))
        if op.startswith("v_mfma"):
            self.kind = "mfma"; self.w = R[0]; self.a = R[1]; self.b = R[2]; self.c = R[3]; self.r = R[1] | R[2] | R[3]
            self.passes = 8 if "32x32" in op else (2 if "4x4x4" in op else 4)
        elif op.startswith("v_"):
            self.kind = "valu"
            if op.startswith("v_permlane") and "swap" in op:
                self.w = R[0] | R[1]; self.r = R[0] | R[1]
            elif op.startswith("v_cmp"):
                self.w = R[0] | ({("x", "exec")} if op.startswith("v_cmpx") else set()); self.r = allr(R[1:])
            elif "_co_" in op:
                self.w = R[0] | R[1]; self.r = allr(R[2:])
            elif op == "v_nop":
                pass
            else:
                self.w = R[0]; self.r = allr(R[1:])
                if op.startswith(("v_fmac", "v_dot2c", "v_pk_fmac", "v_writelane")) or (self.dpp and not re.search(r"row_mask:0xf bank_mask:0xf", self.mods)):
                    self.r |= R[0]
            self.trans = op.startswith(TRANS)
            self.dot = op.startswith("v_dot")
        elif op.startswith(("buffer_", "global_", "flat_")):
            self.kind = "vmem"
            isload = "_load" in op
            lds = " lds" in (" " + self.mods)
            if isload and not lds and "load_lds" not in op:
                self.w = R[0]; self.r = allr(R[1:])
            else:
                self.r = allr(R)
                if "atomic" in op and "sc0" in self.mods: self.w = R[0]
            if lds or "load_lds" in op: self.r |= {("x", "m0")}
            self.wide_store = (not isload) and ("x4" in op or "x3" in op)
            self.sdata = set()
            if self.wide_store:
                self.sdata = R[0] if op.startswith("buffer_") else R[1]
        elif op.startswith("ds_"):
            self.kind = "ds"
            if op.startswith(("ds_read", "ds_bpermute", "ds_permute", "ds_swizzle")) or "_rtn" in op:
                self.w = R[0]; self.r = allr(R[1:])
            else:
                self.r = allr(R)
        elif op.startswith("s_"):
            self.kind = "salu"
            if op.startswith(("s_cmp", "s_bitcmp", "s_cbranch", "s_branch", "s_waitcnt", "s_nop", "s_barrier", "s_sleep", "s_setprio", "s_endpgm")):
                self.r = allr(R)
            else:
                self.w = R[0] if R else set(); self.r = allr(R[1:])
                if "saveexec" in op: self.w |= {("x", "exec")}
    def states(self):
        if self.label or self.directive or self.empty: return 0
        if self.op == "s_nop": return int(self.ops[0], 0) + 1
        return 1
def need(p, c):
    n = 0
    isv = lambda s: {x for x in s if x[0] in "va"}
    iss = lambda s: {x for x in s if x[0] == "s" or x == ("x", "vcc")}
    if p.kind == "valu":
        pv = isv(p.w); ps = iss(p.w)
        if c.kind == "mfma" and pv & c.r: n = max(n, 2)
        if c.kind == "valu":
            if c.dpp and pv & c.r: n = max(n, 2)
            if c.op.startswith("v_permlane") and pv & c.r: n = max(n, 2)
            if c.op.startswith(("v_readlane", "v_readfirstlane")) and pv & c.r: n = max(n, 1)
            if p.trans and pv & c.r: n = max(n, 1)
            if ps & c.r: n = max(n, 4 if c.op.startswith(("v_readlane", "v_writelane")) else 2)
            if c.op.startswith("v_cndmask") and len(c.ops) == 3 and ("x", "vcc") in p.w: n = max(n, 2)
            if p.dot and (pv & (c.r | c.w)):
                if c.op == p.op and not (pv & (set().union(*[regs_of(o) for o in c.ops[1:3]]))): pass
                else: n = max(n, 3)
            if ("x", "exec") in p.w:
                if c.dpp: n = max(n, 5)
                if c.op.startswith(("v_readlane", "v_readfirstlane", "v_writelane", "v_permlane")): n = max(n, 4)
                if ("x", "exec") in c.r: n = max(n, 2)
        if p.dot and c.kind in ("vmem", "ds", "mfma") and pv & (c.r | c.w): n = max(n, 3)
        if c.kind == "vmem" and ps & c.r: n = max(n, 5)
        if c.kind == "salu" and ps & c.r: n = max(n, 1)
        if c.kind == "mfma" and ("x", "exec") in p.w: n = max(n, 4)
    if p.kind == "mfma":
        tab = {2: (2, 4, 5, 1), 4: (0, 6, 8, 3), 8: (0, 10, 12, 7)}[p.passes]
        if c.kind == "mfma":
            if p.w & c.c: n = max(n, tab[0] if (p.w == c.c and p.passes == c.passes) else tab[1])
            if p.w & (c.a | c.b): n = max(n, tab[2])
            if p.w & c.w and not (p.w == c.c): n = max(n, tab[2])
        elif c.kind in ("valu", "vmem", "ds"):
            if p.w & (c.r | c.w): n = max(n, tab[2])
            if c.kind == "valu" and p.c & c.w: n = max(n, tab[3])
    if p.kind == "vmem" and p.wide_store and c.kind in ("valu", "mfma", "vmem", "ds") and p.sdata & c.w: n = max(n, 2)
    if p.kind == "salu" and ("x", "m0") in p.w and ("x", "m0") in c.r and c.kind == "vmem": n = max(n, 1)
    return n
def fix_hazards(lines):
    out = []
    for text in lines:
        c = Ins(text)
        if not (c.label or c.directive or c.empty):
            dist = 0; req = 0
            for p in reversed(out):
                if dist >= 20: break
                if p.op in ("s_branch", "s_endpgm"): break
                k = need(p, c)
                if k - dist > req: req = k - dist
                dist += p.states()
            while req > 0:
                k = min(req, 16)
                out.append(Ins(f"s_nop {k-1}")); req -= k
        out.append(c)
    return [i.text for i in out]
```

```python
import sys, math, struct
from asmlib import fix_hazards
NAME = "concat_heads__sliding_block_cached__gqa_block_cached__decode"
HEADER = open("cdna_kernels/%s.s.ref" % NAME).read().split("; Override launch geometry")[0]

QG = 4096; H1 = 0x10000; P2 = 0x140000; WSZ = 0x280000
BLK = 2304; PROW = 4608
L_FQ = 0; L_FO = 4; L_TAG = 8; L_FLAGW = 32; L_O = 256; L_Q = 512; L_OS = 2048; L_ST = 13312; LDS = 19456
SCALE = struct.unpack("<I", struct.pack("<f", (128 ** -0.5) * math.log2(math.e)))[0]
FULL = "row_mask:0xf bank_mask:0xf"

def gen(stamps=False, nt="nt", opts=None):
    opts = opts or {}
    L = []
    e = L.append
    uid = [0]
    def lab(p):
        uid[0] += 1; return f"L_{p}{uid[0]}"
    def stamp(k):
        if stamps: e(f"s_memrealtime s[{64+2*k}:{65+2*k}]")
    def lds_poll(addr_v, tmp_v, off=0, sleep=1):
        a = lab("lp"); b = lab("lpx")
        e("s_mov_b32 s62, 0x80000")
        e(f"{a}:")
        e(f"ds_read_b32 v{tmp_v}, v{addr_v} offset:{off}")
        e("s_waitcnt lgkmcnt(0)")
        e(f"v_cmp_ne_u32 vcc, 0, v{tmp_v}")
        e(f"s_cbranch_vccnz {b}")
        if sleep: e(f"s_sleep {sleep}")
        e("s_sub_u32 s62, s62, 1")
        e(f"s_cbranch_scc0 {a}")
        e(f"{b}:")
    def tagcheck(regs, tagop, loop, done):
        for r in regs: e(f"v_cmpx_eq_u32 vcc, {tagop}, v{r}")
        e("s_nop 0")
        e("s_cmp_eq_u64 exec, -1")
        e("s_mov_b64 exec, -1")
        e(f"s_cbranch_scc1 {done}")
        e("s_sub_u32 s62, s62, 1")
        e(f"s_cbranch_scc0 {loop}")
        e(f"{done}:")
        e("s_nop 4")

    e(f"{NAME}_kernel:")
    stamp(0)
    e("s_cmp_ge_u32 s2, 256"); e("s_cbranch_scc1 L_end")
    e("s_load_dwordx16 s[4:19], s[0:1], 0")
    e("s_load_dwordx8 s[20:27], s[0:1], 64")
    e("s_load_dwordx2 s[28:29], s[0:1], 96")
    e("v_lshrrev_b32 v1, 6, v0")
    e("v_and_b32 v0, 63, v0")
    e("v_mov_b32 v2, 0")
    e("v_readfirstlane_b32 s3, v1")
    e("v_lshlrev_b32 v3, 2, v0")
    e("ds_write_b32 v3, v2")
    e("s_and_b32 s30, s2, 7"); e("s_lshr_b32 s31, s2, 3")
    e("s_lshl_b32 s30, s30, 1"); e("s_lshr_b32 s48, s31, 4"); e("s_add_u32 s30, s30, s48")
    e("s_and_b32 s31, s31, 15")
    e("s_mov_b32 s35, 0x20000"); e("s_mov_b32 s39, 0x20000"); e("s_mov_b32 s43, 0x20000")
    e(f"s_mov_b32 s42, {WSZ}")
    e("v_lshlrev_b32 v3, 4, v0")
    e("s_waitcnt lgkmcnt(0)")
    e("s_mov_b32 s40, s28"); e("s_mov_b32 s41, s29")
    e("s_barrier")
    e("s_cmp_eq_u32 s3, 0"); e("s_cbranch_scc1 L_svc")
    e("s_cmp_eq_u32 s3, 11"); e("s_cbranch_scc1 L_wo")
    e("s_cmp_lt_u32 s3, 3")
    e("s_cselect_b32 s32, s6, s16"); e("s_cselect_b32 s33, s7, s17")
    e("s_cselect_b32 s36, s8, s18"); e("s_cselect_b32 s37, s9, s19")
    e("s_cselect_b32 s49, 0, 1")
    e("s_cselect_b32 s50, 15, 17")
    e(f"s_cselect_b32 s51, {(6144+128)*256}, 0")
    e("s_lshl_b32 s52, s31, s50")
    e("s_sub_u32 s53, s3, 3"); e("s_lshl_b32 s53, s53, 14")
    e("s_add_u32 s52, s52, s51"); e("s_add_u32 s52, s52, s53")
    e("s_lshl_b32 s53, s30, 21"); e("s_add_u32 s52, s52, s53")
    e("s_mov_b32 s34, 0x2000000"); e("s_mov_b32 s38, 0x2000000")
    e("s_add_u32 s53, s52, 4096"); e("s_add_u32 s54, s52, 8192"); e("s_add_u32 s55, s52, 12288")
    e("v_and_b32 v4, 3, v0"); e("v_lshlrev_b32 v4, 4, v4"); e("v_lshrrev_b32 v5, 4, v0"); e("v_lshl_add_u32 v4, v5, 6, v4")
    e("v_bfe_u32 v6, v0, 2, 2"); e("v_lshl_add_u32 v6, v6, 8, v4")
    KR = 8; VR = 72
    for u in range(16):
        e(f"buffer_load_dwordx4 v[{KR+4*u}:{KR+4*u+3}], v6, s[32:35], s{52+u//4} offen offset:{(u%4)*1024} {nt}")
    for u in range(16):
        e(f"buffer_load_dwordx4 v[{VR+4*u}:{VR+4*u+3}], v3, s[36:39], s{52+u//4} offen offset:{(u%4)*1024} {nt}")
    stamp(1)
    e("v_bfe_u32 v5, v0, 3, 1"); e("v_lshl_add_u32 v4, v5, 8, v4")
    e("s_lshl_b32 s56, s49, 9"); e("v_add_u32 v4, s56, v4")
    e("v_and_b32 v5, 1, v0"); e("v_lshlrev_b32 v5, 4, v5"); e("v_mov_b32 v6, 0xffff"); e("v_lshlrev_b32 v5, v5, v6")
    e("v_bfe_u32 v6, v0, 1, 2")
    for r in range(4):
        e(f"v_cmp_eq_u32 vcc, {r}, v6"); e(f"v_cndmask_b32 v{160+r}, 0, v5, vcc")
    e(f"s_mov_b32 s57, {SCALE:#x}")
    e("v_mov_b32 v7, s57")
    e("s_waitcnt vmcnt(16)")
    stamp(2)
    lds_poll(2, 5, L_FQ)
    e(f"ds_read_b128 v[136:139], v4 offset:{L_Q}")
    e(f"ds_read_b32 v1, v2 offset:{L_TAG}")
    e("s_waitcnt lgkmcnt(0)")
    stamp(3)
    D = lambda u: 140 if u == 0 else KR + 4 * (u - 1)
    X = 144
    def xs(us):
        for s in range(4):
            for u in us:
                op = "v_mul_f32_dpp" if s == 0 else "v_fmac_f32_dpp"
                e(f"{op} v{X+u}, v{D(u)+s}, v7 quad_perm:[{s},{s},{s},{s}] {FULL}")
    for u in range(16):
        e(f"v_mfma_f32_16x16x32_bf16 v[{D(u)}:{D(u)+3}], v[{KR+4*u}:{KR+4*u+3}], v[136:139], 0")
        if u % 4 == 3 and u >= 7: xs(range(u - 7, u - 3))
    xs(range(12, 16))
    e(f"v_max3_f32 v5, v{X}, v{X+1}, v{X+2}")
    e(f"v_max3_f32 v6, v{X+3}, v{X+4}, v{X+5}")
    for k in range(6, 14, 4):
        e(f"v_max3_f32 v5, v5, v{X+k}, v{X+k+1}")
        e(f"v_max3_f32 v6, v6, v{X+k+2}, v{X+k+3}")
    e(f"v_max3_f32 v5, v5, v{X+14}, v{X+15}")
    e("v_max_f32 v5, v5, v6")
    for sw in ("32", "16"):
        e("v_mov_b32 v6, v5"); e(f"v_permlane{sw}_swap_b32 v5, v6"); e("v_max_f32 v5, v5, v6")
    for u in range(16): e(f"v_sub_f32 v{X+u}, v{X+u}, v5")
    for u in range(16): e(f"v_exp_f32 v{X+u}, v{X+u}")
    e(f"v_add_f32 v6, v{X}, v{X+1}"); e(f"v_add_f32 v4, v{X+2}, v{X+3}")
    for u in range(4, 16, 2):
        e(f"v_add_f32 v6, v6, v{X+u}"); e(f"v_add_f32 v4, v4, v{X+u+1}")
    e("v_add_f32 v6, v6, v4")
    for u in range(16): e(f"v_cvt_pk_bf16_f32 v{X+u}, v{X+u}, v{X+u}")
    for u in range(16):
        for r in range(4): e(f"v_and_b32 v{KR+4*u+r}, v{X+u}, v{160+r}")
    for sw in ("32", "16"):
        e("v_mov_b32 v4, v6"); e(f"v_permlane{sw}_swap_b32 v6, v4"); e("v_add_f32 v6, v6, v4")
    e("v_mov_b32_dpp v140, v5 row_newbcast:0 row_mask:0x3 bank_mask:0xf")
    e("v_mov_b32_dpp v140, v5 row_newbcast:8 row_mask:0xc bank_mask:0xf")
    e("v_mov_b32_dpp v141, v6 row_newbcast:0 row_mask:0x3 bank_mask:0xf")
    e("v_mov_b32_dpp v141, v6 row_newbcast:8 row_mask:0xc bank_mask:0xf")
    stamp(4)
    e("s_lshl_b32 s56, s3, 10"); e("v_add_u32 v4, s56, v3")
    e("v_lshrrev_b32 v5, 1, v4")
    e("s_lshl_b32 s56, s3, 2"); e("v_mov_b32 v6, s56")
    e("v_mov_b32 v142, 1.0")
    for r in range(4): e(f"v_mov_b32 v{144+r}, 0")
    def prep():
        lds_poll(6, 143, L_FLAGW - 4)
        e(f"ds_read_b64 v[148:149], v5 offset:{L_ST-512}")
        e(f"ds_read_b128 v[144:147], v4 offset:{L_OS-1024}")
        e("s_waitcnt lgkmcnt(1)")
        e("v_max_f32 v150, v140, v148")
        e("v_sub_f32 v142, v140, v150"); e("v_sub_f32 v148, v148, v150")
        e("v_exp_f32 v142, v142"); e("v_exp_f32 v148, v148")
        e("v_mov_b32 v140, v150")
        e("v_mul_f32 v141, v141, v142"); e("v_fmac_f32 v141, v149, v148")
        e("s_waitcnt lgkmcnt(0)")
        for r in range(4): e(f"v_mul_f32 v{144+r}, v{144+r}, v148")
    e("s_and_b32 s58, s3, 7"); e("s_cmp_eq_u32 s58, 2"); e("s_cbranch_scc0 L_pv")
    prep()
    e("L_pv:")
    for u in range(16):
        e(f"s_waitcnt vmcnt({15-u})")
        c = "0" if u == 0 else "v[164:167]"
        e(f"v_mfma_f32_16x16x32_bf16 v[164:167], v[{KR+4*u}:{KR+4*u+3}], v[{VR+4*u}:{VR+4*u+3}], {c}")
    stamp(5)
    e("s_cmp_eq_u32 s58, 2"); e("s_cbranch_scc1 L_last")
    e("s_cmp_le_u32 s3, 3"); e("s_cbranch_scc1 L_first")
    prep()
    e("L_first:")
    e("s_nop 7")
    for r in range(4): e(f"v_fmac_f32 v{144+r}, v{164+r}, v142")
    e(f"ds_write_b128 v4, v[144:147] offset:{L_OS}")
    e(f"ds_write_b64 v5, v[140:141] offset:{L_ST}")
    e("v_mov_b32 v7, 1")
    e("s_waitcnt lgkmcnt(0)")
    e(f"ds_write_b32 v6, v7 offset:{L_FLAGW}")
    e("s_branch L_fin")
    e("L_last:")
    e("s_lshl_b32 s56, s30, 5"); e("s_add_u32 s56, s56, s49")
    e(f"s_mul_i32 s57, s56, {BLK}"); e(f"s_add_u32 s57, s57, {H1}")
    e(f"s_mul_i32 s59, s31, {2*BLK}"); e("s_add_u32 s59, s59, s57")
    e("v_mov_b32 v149, v1"); e("v_mov_b32 v151, v1"); e("v_mov_b32 v153, v1"); e("v_mov_b32 v155, v1")
    e("v_fma_f32 v148, v164, v142, v144"); e("v_fma_f32 v150, v165, v142, v145")
    e("v_fma_f32 v152, v166, v142, v146"); e("v_fma_f32 v154, v167, v142, v147")
    e("buffer_store_dwordx4 v[148:151], v3, s[40:43], s59 offen sc1")
    e("buffer_store_dwordx4 v[152:155], v3, s[40:43], s59 offen offset:1024 sc1")
    e("v_mov_b32 v156, v140"); e("v_mov_b32 v157, v1"); e("v_mov_b32 v158, v141"); e("v_mov_b32 v159, v1")
    e("v_lshrrev_b32 v5, 5, v3")
    e("s_mov_b32 exec_lo, 1"); e("s_mov_b32 exec_hi, 1")
    e("buffer_store_dwordx4 v[156:159], v5, s[40:43], s59 offen offset:2048 sc1")
    e("s_mov_b64 exec, -1")
    stamp(6)
    e("s_lshr_b32 s56, s31, 3"); e("s_cmp_eq_u32 s56, s49"); e("s_cbranch_scc0 L_fin")
    e("s_and_b32 s56, s31, 7")
    e("s_lshl_b32 s59, s56, 8"); e("s_add_u32 s59, s59, s57")
    e("s_bfe_u32 s56, s56, 0x10001"); e("s_lshl_b32 s56, s56, 4"); e("s_add_u32 s57, s57, s56")
    e("v_and_b32 v4, 15, v0"); e(f"v_mul_u32_u24 v4, {2*BLK}, v4")
    e("v_and_b32 v5, 48, v0"); e("v_add_u32 v5, v5, v4")
    e("s_mov_b32 s62, 0x8000")
    e("L_h1:")
    for n in range(4):
        e(f"buffer_load_dwordx4 v[{8+4*n}:{11+4*n}], v5, s[40:43], s59 offen offset:{n*64} sc1")
    e("buffer_load_dwordx4 v[24:27], v4, s[40:43], s57 offen offset:2048 sc1")
    e("s_waitcnt vmcnt(0)")
    tagcheck([9 + 2 * i for i in range(10)], "v1", "L_h1", "L_h1x")
    e("v_mov_b32 v28, v24")
    for sh in (8, 4, 2, 1):
        e(f"v_max_f32_dpp v28, v28, v28 row_ror:{sh} {FULL}")
    e("v_sub_f32 v24, v24, v28"); e("v_exp_f32 v24, v24")
    e("v_mul_f32 v26, v26, v24")
    vals = [8 + 2 * i for i in range(8)]
    for r in vals: e(f"v_mul_f32 v{r}, v{r}, v24")
    for sh in (8, 4, 2, 1):
        for r in [26] + vals: e(f"v_add_f32_dpp v{r}, v{r}, v{r} row_ror:{sh} {FULL}")
    e("v_rcp_f32 v26, v26")
    for r in vals: e(f"v_mul_f32 v{r}, v{r}, v26")
    for n in range(4): e(f"v_cvt_pk_bf16_f32 v{28+n}, v{8+4*n}, v{10+4*n}")
    e("v_and_b32 v5, 48, v0")
    e(f"ds_write_b128 v5, v[28:31] offset:{L_O}")
    e("v_mov_b32 v7, 1")
    e("s_waitcnt lgkmcnt(0)")
    e(f"ds_write_b32 v2, v7 offset:{L_FO}")
    stamp(7)
    e("s_branch L_fin")
    e("L_svc:")
    e("s_load_dword s60, s[28:29], 0")
    e("s_cmp_lt_u32 s31, 8")
    e("s_cselect_b32 s32, s10, s20"); e("s_cselect_b32 s33, s11, s21")
    e("s_cselect_b32 s36, s4, s14"); e("s_cselect_b32 s37, s5, s15")
    e("s_mov_b32 s34, 4718592"); e("s_mov_b32 s38, 1152")
    e("s_and_b32 s48, s31, 7"); e("s_lshl_b32 s48, s48, 6"); e("s_lshl_b32 s49, s30, 9"); e("s_add_u32 s48, s48, s49")
    e("v_lshrrev_b32 v4, 2, v0"); e("v_mul_u32_u24 v5, 72, v4"); e(f"v_mul_u32_u24 v4, {36*8192}, v4")
    e("v_and_b32 v1, 3, v0"); e("v_lshl_add_u32 v4, v1, 4, v4")
    W = 6; XR = 150
    for i in range(4): e(f"buffer_load_dwordx4 v[{XR+4*i}:{XR+4*i+3}], v5, s[36:39], 0 offen offset:{16*i}")
    e(f"buffer_load_dwordx2 v[{XR+16}:{XR+17}], v5, s[36:39], 0 offen offset:64")
    for i in range(36):
        e(f"buffer_load_dwordx4 v[{W+4*i}:{W+4*i+3}], v4, s[32:35], s48 offen {nt}")
        if i < 35: e("s_add_u32 s48, s48, 8192")
    stamp(1)
    e("s_mov_b32 s50, 0x05040100"); e("s_mov_b32 s51, 0x07060302")
    for ip in range(18):
        a = W + 8 * ip; b = a + 4
        e(f"s_waitcnt vmcnt({34 - 2*ip})")
        for r in range(4):
            t0, t1 = (4, 5) if r % 2 == 0 else (1, 2)
            e(f"v_perm_b32 v{t0}, v{b+r}, v{a+r}, s50")
            e(f"v_perm_b32 v{t1}, v{b+r}, v{a+r}, s51")
            c0 = "0" if ip == 0 else f"v{W+r}"; c1 = "0" if ip == 0 else f"v{W+4+r}"
            e(f"v_dot2_f32_bf16 v{W+r}, v{t0}, v{XR+ip}, {c0}")
            e(f"v_dot2_f32_bf16 v{W+4+r}, v{t1}, v{XR+ip}, {c1}")
    stamp(2)
    acc = lambda c: (W + c // 2) if c % 2 == 0 else (W + 4 + c // 2)
    for c in range(4):
        e(f"v_permlane32_swap_b32 v{acc(c)}, v{acc(c+4)}")
    for c in range(4):
        e(f"v_add_f32 v{acc(c)}, v{acc(c)}, v{acc(c+4)}")
    for c in range(2):
        e(f"v_permlane16_swap_b32 v{acc(c)}, v{acc(c+2)}")
    for c in range(2):
        e(f"v_add_f32 v{acc(c)}, v{acc(c)}, v{acc(c+2)}")
    for sh in (4, 8):
        for c in range(2): e(f"v_add_f32_dpp v{acc(c)}, v{acc(c)}, v{acc(c)} row_ror:{sh} {FULL}")
    e("s_waitcnt lgkmcnt(0)")
    e("s_mul_i32 s60, s60, 0x9E3779B1"); e("s_add_u32 s60, s60, 0x7F4A7C15")
    e(f"v_cvt_pk_bf16_f32 v20, v{acc(0)}, v{acc(1)}")
    e("v_mov_b32 v21, s60")
    e("v_and_b32 v4, 3, v0"); e("v_lshlrev_b32 v4, 5, v4"); e("v_lshrrev_b32 v5, 4, v0"); e("v_lshl_add_u32 v4, v5, 3, v4")
    e("s_lshl_b32 s48, s30, 11"); e(f"s_add_u32 s48, s48, {QG}")
    e("s_lshl_b32 s49, s31, 7"); e("s_add_u32 s49, s49, s48")
    e("s_mov_b32 exec_lo, 0x000f000f"); e("s_mov_b32 exec_hi, 0x000f000f")
    e("buffer_store_dwordx2 v[20:21], v4, s[40:43], s49 offen sc1")
    e("s_mov_b64 exec, -1")
    stamp(3)
    e("s_mov_b32 s62, 0x8000")
    e("L_qp:")
    e("buffer_load_dwordx4 v[24:27], v3, s[40:43], s48 offen sc1")
    e("buffer_load_dwordx4 v[28:31], v3, s[40:43], s48 offen offset:1024 sc1")
    e("s_waitcnt vmcnt(0)")
    tagcheck([25, 27, 29, 31], "v21", "L_qp", "L_qpx")
    e("v_mov_b32 v25, v26"); e("v_mov_b32 v29, v30")
    e("v_lshlrev_b32 v4, 3, v0")
    e("v_mov_b32 v2, 0")
    e(f"ds_write_b64 v4, v[24:25] offset:{L_Q}")
    e(f"ds_write_b64 v4, v[28:29] offset:{L_Q+512}")
    e(f"ds_write_b32 v2, v21 offset:{L_TAG}")
    e("v_mov_b32 v7, 1")
    e("s_waitcnt lgkmcnt(0)")
    e(f"ds_write_b32 v2, v7 offset:{L_FQ}")
    stamp(4)
    e("s_branch L_fin")
    e("L_wo:")
    e("s_cmp_lt_u32 s31, 8")
    e("s_cselect_b32 s32, s12, s22"); e("s_cselect_b32 s33, s13, s23")
    e("s_mov_b32 s34, 4718592")
    e("s_lshl_b32 s48, s30, 8")
    e("s_bfe_u32 s49, s31, 0x10001"); e("s_lshl_b32 s49, s49, 7"); e("s_add_u32 s48, s48, s49")
    e("s_and_b32 s49, s31, 1"); e("s_lshl_b32 s49, s49, 2"); e("s_add_u32 s48, s48, s49")
    e("s_bfe_u32 s49, s31, 0x10002"); e("s_lshl_b32 s49, s49, 1"); e("s_add_u32 s48, s48, s49")
    e("s_mul_i32 s52, s48, 1152")
    for mm in range(1, 4): e(f"s_add_u32 s{52+mm}, s52, {mm*32*1152}")
    e("v_lshrrev_b32 v4, 4, v0"); e("v_lshlrev_b32 v4, 3, v4"); e("v_bfe_u32 v5, v0, 3, 1"); e("v_add_u32 v4, v4, v5")
    e("v_mul_u32_u24 v4, 1152, v4"); e("v_and_b32 v5, 7, v0"); e("v_lshl_add_u32 v4, v5, 4, v4")
    B = lambda cg, mm: 8 + (mm * 9 + cg) * 4
    for mm in range(4):
        for cg in range(9):
            e(f"buffer_load_dwordx4 v[{B(cg,mm)}:{B(cg,mm)+3}], v4, s[32:35], s{52+mm} offen offset:{cg*128} {nt}")
    stamp(1)
    e("v_bfe_u32 v1, v0, 1, 1"); e("v_mul_u32_u24 v1, 0x0202, v1"); e("v_add_u32 v1, 0x0100, v1")
    e("v_xor_b32 v1, 0x0c0c, v1")
    e("v_and_b32 v3, 1, v0"); e("v_lshlrev_b32 v3, 4, v3"); e("v_lshlrev_b32 v1, v3, v1")
    e("v_xor_b32 v1, 0x0c0c0c0c, v1")
    e("v_bfe_u32 v3, v0, 2, 2"); e("v_mov_b32 v152, 0x0c0c0c0c")
    for r in range(4):
        e(f"v_cmp_eq_u32 vcc, {r}, v3"); e(f"v_cndmask_b32 v{4+r}, v152, v1, vcc")
    e("v_and_b32 v3, 48, v0")
    e("s_lshr_b32 s48, s31, 3"); e("s_lshl_b32 s48, s48, 7"); e("s_lshl_b32 s49, s30, 3"); e("s_add_u32 s48, s48, s49")
    e("s_and_b32 s49, s31, 7"); e("s_add_u32 s48, s48, s49"); e(f"s_mul_i32 s56, s48, {PROW}"); e(f"s_add_u32 s56, s56, {P2}")
    e("s_add_u32 s57, s56, 4096")
    e("s_waitcnt vmcnt(0)")
    stamp(2)
    lds_poll(2, 1, L_FO)
    e(f"ds_read_b128 v[156:159], v3 offset:{L_O}")
    e(f"ds_read_b32 v1, v2 offset:{L_TAG}")
    e("s_waitcnt lgkmcnt(0)")
    stamp(3)
    A = lambda cg: 152 if cg == 0 else B(cg - 1, 0)
    for mm in range(4):
        ar = 160 + 4 * (mm % 2)
        for r in range(4): e(f"v_perm_b32 v{ar+r}, v{156+mm}, v{156+mm}, v{4+r}")
        for cg in range(9):
            c = "0" if mm == 0 else f"v[{A(cg)}:{A(cg)+3}]"
            e(f"v_mfma_f32_16x16x32_bf16 v[{A(cg)}:{A(cg)+3}], v[{ar}:{ar+3}], v[{B(cg,mm)}:{B(cg,mm)+3}], {c}")
    e("v_and_b32 v4, 15, v0"); e("v_lshlrev_b32 v4, 6, v4"); e("v_add_u32 v4, v4, v3")
    R0 = 44
    for s in range(5):
        e(f"v_mov_b32 v{R0+4*s+1}, v1"); e(f"v_mov_b32 v{R0+4*s+3}, v1")
    for s in range(5):
        Xr = A(2 * s)
        for b in range(2):
            e(f"v_add_f32_dpp v{R0+4*s+2*b}, v{Xr+2+b}, v{Xr+b} row_ror:8 row_mask:0xf bank_mask:0x3")
        if s < 4:
            Yr = A(2 * s + 1)
            for b in range(2):
                e(f"v_add_f32_dpp v{R0+4*s+2*b}, v{Yr+b}, v{Yr+2+b} row_ror:8 row_mask:0xf bank_mask:0xc")
            e(f"buffer_store_dwordx4 v[{R0+4*s}:{R0+4*s+3}], v4, s[40:43], s56 offen offset:{s*1024} sc1")
        else:
            e("s_mov_b32 exec_lo, 0x00ff00ff"); e("s_mov_b32 exec_hi, 0x00ff00ff")
            e(f"buffer_store_dwordx4 v[{R0+4*s}:{R0+4*s+3}], v4, s[40:43], s57 offen sc1")
            e("s_mov_b64 exec, -1")
    stamp(4)
    e("s_cmp_ge_u32 s2, 144"); e("s_cbranch_scc1 L_fin")
    e("s_cmp_ge_u32 s2, 72")
    e(f"s_cselect_b32 s48, {128*PROW - 72*64}, 0"); e(f"s_add_u32 s48, s48, {P2}")
    e("s_lshl_b32 s49, s2, 6"); e("s_add_u32 s48, s48, s49")
    for n in range(1, 8): e(f"s_add_u32 s{48+n}, s48, {n*16*PROW}")
    e("v_lshrrev_b32 v4, 2, v0"); e(f"v_mul_u32_u24 v4, {PROW}, v4"); e("v_and_b32 v5, 3, v0"); e("v_lshl_add_u32 v4, v5, 4, v4")
    e("s_mov_b32 s44, s24"); e("s_mov_b32 s45, s25"); e("s_mov_b32 s46, 2304"); e("s_mov_b32 s47, 0x20000")
    e("s_mov_b32 s62, 0x8000")
    e("L_h2:")
    for n in range(8):
        e(f"buffer_load_dwordx4 v[{72+4*n}:{75+4*n}], v4, s[40:43], s{48+n} offen sc1")
    e("s_waitcnt vmcnt(0)")
    tagcheck([73 + 2 * i for i in range(16)], "v1", "L_h2", "L_h2x")
    stamp(5)
    for step in (4, 2, 1):
        for n in range(step):
            for b in (0, 2): e(f"v_add_f32 v{72+4*n+b}, v{72+4*n+b}, v{72+4*(n+step)+b}")
    for sh in (4, 8):
        for b in (72, 74): e(f"v_add_f32_dpp v{b}, v{b}, v{b} row_ror:{sh} {FULL}")
    for sw in ("32", "16"):
        e("v_mov_b32 v73, v72"); e("v_mov_b32 v75, v74")
        e(f"v_permlane{sw}_swap_b32 v72, v73"); e(f"v_permlane{sw}_swap_b32 v74, v75")
        e("v_add_f32 v72, v72, v73"); e("v_add_f32 v74, v74, v75")
    e("v_cvt_pk_bf16_f32 v72, v72, v74")
    e("v_lshlrev_b32 v5, 2, v0")
    e("s_lshl_b32 s48, s2, 4")
    e("s_mov_b64 exec, 15")
    e("buffer_store_dword v72, v5, s[44:47], s48 offen")
    e("s_cmp_eq_u32 s2, 0"); e("s_cbranch_scc0 L_fin")
    e("s_mov_b64 exec, 1")
    e("buffer_store_dword v1, v2, s[40:43], 0 offen sc1")
    e("L_fin:")
    if stamps:
        e("s_mov_b64 exec, -1")
        e("s_memrealtime s[80:81]")
        e("s_waitcnt lgkmcnt(0)")
        e("s_lshl_b32 s48, s2, 4"); e("s_add_u32 s48, s48, s3"); e("s_lshl_b32 s48, s48, 7"); e("s_add_u32 s48, s48, 0x8000000")
        e("s_add_u32 s28, s28, s48"); e("s_addc_u32 s29, s29, 0")
        for i in range(18): e(f"v_mov_b32 v{8+i}, s{64+i}")
        e("v_mov_b32 v1, 0")
        e("s_mov_b64 exec, 1")
        for i in range(4): e(f"global_store_dwordx4 v1, v[{8+4*i}:{11+4*i}], s[28:29] offset:{16*i}")
        e("global_store_dwordx2 v1, v[24:25], s[28:29] offset:64")
    e("L_end:")
    e("s_endpgm")
    body = fix_hazards(L)
    if stamps:
        idx = 2
        body = body[:idx] + [f"s_mov_b64 s[{64+2*k}:{65+2*k}], 0" for k in range(1, 9)] + body[idx:]
    out = [HEADER.rstrip("\n"), f"; @launch grid=(256,1,1) block=(768,1,1) lds={LDS}",
           '.amdgcn_target "amdgcn-amd-amdhsa--gfx950"', ".text", f".globl {NAME}_kernel", ".p2align 8",
           f".type {NAME}_kernel,@function"]
    out += [("" if l.endswith(":") else "    ") + l for l in body]
    out += ['.section .rodata,"a"', ".p2align 6", f".amdhsa_kernel {NAME}_kernel",
            "  .amdhsa_next_free_vgpr 168", "  .amdhsa_next_free_sgpr 96", "  .amdhsa_accum_offset 168",
            "  .amdhsa_group_segment_fixed_size 0", "  .amdhsa_kernarg_size 104", "  .amdhsa_user_sgpr_count 2",
            "  .amdhsa_user_sgpr_kernarg_segment_ptr 1", "  .amdhsa_system_sgpr_workgroup_id_x 1", ".end_amdhsa_kernel"]
    return "\n".join(out) + "\n"
if __name__ == "__main__":
    open("v1.s", "w").write(gen())
    open("v1_st.s", "w").write(gen(stamps=True))
    open("v1_def.s", "w").write(gen(nt=""))
```
